```python
import torch

def _softmax(x, axis=-1):
    return torch.softmax(x, dim=axis)
def _gelu(x):
    return torch.nn.functional.gelu(x, approximate="tanh")
def _silu(x):
    return torch.nn.functional.silu(x)
def _sigmoid(x):
    return torch.sigmoid(x)
def _layernorm(x, axis=-1, eps=1e-5):
    m = x.mean(dim=axis, keepdim=True)
    v = x.var(dim=axis, keepdim=True, unbiased=False)
    return (x - m) / torch.sqrt(v + eps)
def _scatter_add(tgt, idx, src, axis=0):
    return tgt.clone().index_add_(axis, idx, src)
def _segment_sum(src, seg, n):
    out = torch.zeros((n,) + src.shape[1:], dtype=src.dtype)
    return out.index_add_(0, seg, src)
def _pad(x, pw):
    flat = tuple(v for pair in reversed(pw) for v in pair)
    return torch.nn.functional.pad(x, flat)

kernel_name = 'standalone__gqa_block_cached__near_ridge'

def setup_inputs():

    _w = (lambda a: (lambda t: t.to(torch.bfloat16) if t.is_floating_point() else t)(torch.as_tensor(a)))
    B, Sq, D = 16, 96, 640
    Hq, Hkv, Sk, Dh = 32, 32, 512, 128
    assert Hq % Hkv == 0, (Hq, Hkv)
    return {
        "x": _w((lambda *s: torch.randn(*s, dtype=torch.bfloat16) * 0.8)(B, Sq, D)),
        "k_cache": _w((lambda *s: torch.randn(*s, dtype=torch.bfloat16) * 0.8)(B, Hkv, Sk, Dh)),
        "v_cache": _w((lambda *s: torch.randn(*s, dtype=torch.bfloat16) * 0.05)(B, Hkv, Sk, Dh)),
        "wq": _w((lambda *s: torch.randn(*s, dtype=torch.bfloat16) * 0.8)(D, Hq * Dh) * (D ** -0.5)),
        "wo": _w((lambda *s: torch.randn(*s, dtype=torch.bfloat16) * 0.05)(Hq * Dh, D) * ((Hq * Dh) ** -0.5)),
    }

def reference(x, k_cache, v_cache, wq, wo):
    B, Sq, D = x.shape
    Hq, Dh = 32, 128
    Hkv = k_cache.shape[1]
    rep = Hq // Hkv
    q = (lambda x, *d: x.permute(*d))((x @ wq).reshape(B, Sq, Hq, Dh), 0, 2, 1, 3)
    k = (lambda x, n, axis: torch.repeat_interleave(x, n, dim=axis))(k_cache, rep, axis=1)
    v = (lambda x, n, axis: torch.repeat_interleave(x, n, dim=axis))(v_cache, rep, axis=1)
    scores = torch.einsum("bhqd,bhkd->bhqk", q, k) * (Dh ** -0.5)
    p = _softmax(scores, axis=-1)
    o = torch.einsum("bhqk,bhkd->bhqd", p, v)
    return (lambda x, *d: x.permute(*d))(o, 0, 2, 1, 3).reshape(B, Sq, Hq * Dh) @ wo
```

```python
import re
class Prog:
    def __init__(self):
        self.lines = []
    def __call__(self, s):
        for l in s.split('\n'):
            l = l.strip()
            if l: self.lines.append(l)
    def text(self):
        out = []
        for l in self.lines:
            out.append(l if l.endswith(':') or l.startswith('.') else '    ' + l)
        return '\n'.join(out)

def vr(b, n=1): return f"v{b}" if n == 1 else f"v[{b}:{b+n-1}]"
def ar(b, n=1): return f"a{b}" if n == 1 else f"a[{b}:{b+n-1}]"
def sr(b, n=1): return f"s{b}" if n == 1 else f"s[{b}:{b+n-1}]"

_reg = re.compile(r'^(-|abs\()?([vas])(\d+)\)?$')
_rng = re.compile(r'^(-)?([vas])\[(\d+):(\d+)\]$')
def regs(op):
    op = op.strip()
    m = _rng.match(op)
    if m: return {(m.group(2), i) for i in range(int(m.group(3)), int(m.group(4)) + 1)}
    m = _reg.match(op)
    if m: return {(m.group(2), int(m.group(3)))}
    if op in ('vcc', 'exec', 'm0'): return {(op, 0)}
    if op in ('vcc_lo', 'vcc_hi'): return {('vcc', 0)}
    return set()

TRANS = ('v_exp_f32', 'v_log_f32', 'v_rcp_f32', 'v_rsq_f32', 'v_sqrt_f32', 'v_sin_f32', 'v_cos_f32')
class Ins:
    def __init__(self, line, idx):
        self.line = line; self.idx = idx
        code = line.split(';')[0].strip()
        parts = code.split(None, 1)
        self.op = parts[0]
        rest = parts[1] if len(parts) > 1 else ''
        ops = [o.strip() for o in rest.split(',')] if rest else []
        if ops:
            last = ops[-1].split()
            ops[-1] = last[0] if last else ''
            self.mods = last[1:]
        else: self.mods = []
        self.ops = ops
        op = self.op
        self.w = set(); self.r = set(); self.kind = 'other'
        self.A = self.B = self.C = set()
        R = [regs(o) for o in ops]
        if op.startswith('v_mfma'):
            self.kind = 'mfma'; self.w = R[0]; self.A, self.B, self.C = R[1], R[2], R[3]
            self.r = R[1] | R[2] | R[3]
            self.passes = 8 if '32x32' in op else 4
        elif op.startswith('v_'):
            self.kind = 'valu'
            if op.startswith('v_permlane') and 'swap' in op:
                self.w = R[0] | R[1]; self.r = R[0] | R[1]
            elif op.startswith('v_cmp'):
                self.w = R[0]; self.r = set().union(*R[1:])
            elif op.startswith(('v_add_co', 'v_sub_co', 'v_addc_co', 'v_subb_co')):
                self.w = R[0] | R[1]; self.r = set().union(*R[2:])
            elif op == 'v_nop': pass
            else:
                self.w = R[0]; self.r = set().union(*R[1:]) if len(R) > 1 else set()
                if op.startswith('v_fmac'): self.r |= R[0]
                if op.startswith('v_cndmask') and len(ops) == 3: self.r |= {('vcc', 0)}
        elif op.startswith('ds_read') or op.startswith('ds_bpermute'):
            self.kind = 'dsr'; self.w = R[0]; self.r = set().union(*R[1:])
        elif op.startswith('ds_'):
            self.kind = 'dsw'; self.r = set().union(*R)
        elif op.startswith(('buffer_load', 'global_load')):
            self.kind = 'vmem'
            if 'lds' in self.mods: self.r = set().union(*R) | {('m0', 0)}; self.lds = True
            else: self.w = R[0]; self.r = set().union(*R[1:])
        elif op.startswith(('buffer_store', 'global_store', 'buffer_atomic', 'global_atomic')):
            self.kind = 'vmem'; self.r = set().union(*R)
            self.store_data = R[0] if op.startswith('buffer') else R[1]
            if 'atomic' in op and 'sc0' in self.mods: self.w = R[0]
        elif op.startswith('s_'):
            self.kind = 'salu'
            if op.startswith(('s_cmp', 's_cbranch', 's_branch', 's_waitcnt', 's_barrier', 's_nop', 's_endpgm', 's_setprio', 's_sleep', 's_setpc')):
                self.r = set().union(*R) if R else set()
            else:
                self.w = R[0] if R else set(); self.r = set().union(*R[1:]) if len(R) > 1 else set()
                if 'saveexec' in op: self.w |= {('exec', 0)}
    def states(self):
        if self.op == 's_nop': return int(self.ops[0], 0) + 1
        return 1

def check_hazards(lines, verbose=True):
    ins = []; labels = {}
    for l in lines:
        c = l.split(';')[0].strip()
        if not c or c.startswith('.'): continue
        if c.endswith(':'):
            labels[c[:-1]] = len(ins); continue
        ins.append(Ins(l, len(ins)))
    n = len(ins)
    calls = {}
    for i, x in enumerate(ins):
        if x.op == 's_call_b64': calls.setdefault(x.ops[0], []).append(i + 1)
    def succ(i):
        x = ins[i]
        if x.op == 's_endpgm': return []
        if x.op == 's_branch': return [labels[x.ops[0]]]
        if x.op.startswith('s_cbranch'): return [labels[x.ops[0]], i + 1]
        if x.op == 's_call_b64': return [labels[x.ops[1]]]
        if x.op == 's_setpc_b64': return calls.get(x.ops[0], [])
        return [i + 1] if i + 1 < n else []
    def need(p, c):
        k = 0
        vw = {r for r in p.w if r[0] in 'va'}
        if p.kind == 'valu':
            if c.kind == 'mfma' and vw & c.r: k = max(k, 2)
            if p.op.replace('_e32','').replace('_e64','') in TRANS and c.kind in ('valu',) and vw & c.r and c.op.replace('_e32','').replace('_e64','') not in TRANS: k = max(k, 1)
            if p.op.replace('_e32','').replace('_e64','') in TRANS and c.kind == 'mfma' and vw & c.r: k = max(k, 2)
            if c.op.startswith('v_permlane') and vw & c.r: k = max(k, 2)
            if c.op.startswith(('v_readlane', 'v_readfirstlane')) and vw & c.r: k = max(k, 1)
            if 'dpp' in c.op and vw & c.r: k = max(k, 2)
            sw = {r for r in p.w if r[0] in ('s', 'vcc')}
            if sw & c.r:
                if c.kind == 'valu': k = max(k, 2)
                if c.kind == 'vmem': k = max(k, 5)
            if ('exec', 0) in p.w and c.kind == 'mfma': k = max(k, 4)
        if p.kind == 'mfma':
            big = 12 if p.passes == 8 else 8
            if c.kind == 'mfma':
                if p.w & (c.A | c.B): k = max(k, big)
                if p.w & c.C and not (p.w == c.C and p.passes == c.passes): k = max(k, 10 if p.passes == 8 else 6)
                if p.w & c.w and not (p.w == c.w and p.w == c.C):
                    k = max(k, 0)
            elif c.kind in ('valu', 'dsr', 'dsw', 'vmem'):
                if p.w & (c.r | c.w): k = max(k, big)
            if c.kind == 'valu' and p.C & c.w and not (p.w & c.w): k = max(k, 7 if p.passes == 8 else 3)
        if p.kind == 'vmem' and hasattr(p, 'store_data') and len(p.store_data) >= 3:
            if p.store_data & c.w: k = max(k, 2 if c.kind == 'valu' else 1)
        if p.kind == 'salu' and ('m0', 0) in p.w and getattr(c, 'lds', False): k = max(k, 1)
        return k
    bad = []
    for i, p in enumerate(ins):
        if p.kind not in ('valu', 'mfma', 'vmem', 'salu'): continue
        if p.kind == 'salu' and ('m0', 0) not in p.w: continue
        maxd = 12 if p.kind == 'mfma' else 5
        stack = [(j, 0) for j in succ(i)]; seen = {}
        while stack:
            j, d = stack.pop()
            if j >= n or d >= maxd: continue
            if seen.get(j, 99) <= d: continue
            seen[j] = d
            c = ins[j]
            k = need(p, c)
            if k > d: bad.append((p, c, k, d))
            for s in succ(j): stack.append((s, d + c.states()))
    if verbose:
        for p, c, k, d in bad:
            print(f"HAZARD need {k} have {d}: [{p.idx}] {p.line}  ->  [{c.idx}] {c.line}")
    return bad

def kdesc(name, vgpr, accum, sgpr=102):
    return f""".amdhsa_kernel {name}
  .amdhsa_next_free_vgpr {vgpr}
  .amdhsa_next_free_sgpr {sgpr}
  .amdhsa_accum_offset {accum}
  .amdhsa_group_segment_fixed_size 0
  .amdhsa_kernarg_size 64
  .amdhsa_user_sgpr_count 2
  .amdhsa_user_sgpr_kernarg_segment_ptr 1
  .amdhsa_system_sgpr_workgroup_id_x 1
.end_amdhsa_kernel
"""
def srd(P, d, b, nbytes):
    P(f"s_mov_b32 s{d}, s{b}\ns_and_b32 s{d+1}, s{b+1}, 0xffff\ns_mov_b32 s{d+2}, {nbytes}\ns_mov_b32 s{d+3}, 0x00020000")
```

```python
import sys, math
from asmlib import *
KN = 'standalone__gqa_block_cached__near_ridge'
X_BYTES = 16*96*640*2; KV_BYTES = 16*32*512*128*2; W_BYTES = 640*4096*2; OUT_BYTES = X_BYTES; WS_BYTES = 268435456
OFRAG = 0
WFRAG = 16*1024*1024
STAMP = 0xF000000
ITEM = 8320; NSLOT = 5
KRING = 0; VRING = NSLOT*ITEM
WQ0 = 2*NSLOT*ITEM
XR0 = 132352 + 0
XR0 = WQ0 + 3*16384
LDS1 = XR0 + 3*8192
CSCALE = math.log2(math.e)/math.sqrt(128.0)
import struct
def f2u(f): return struct.unpack('<I', struct.pack('<f', f))[0]
THR = 10.0

def gen(nt=' nt', stamps=False, ost=''):
    out = []
    P = Prog(); n0 = 'wofrag_kernel'
    P(f"{n0}:")
    P("s_cmp_ge_u32 s2, 256\ns_cbranch_scc1 L0_end")
    P("s_load_dwordx2 s[4:5], s[0:1], 32\ns_load_dwordx2 s[6:7], s[0:1], 56")
    P("v_lshrrev_b32 v2, 6, v0\nv_and_b32 v1, 63, v0\ns_nop 0\nv_readfirstlane_b32 s24, v2\ns_waitcnt lgkmcnt(0)")
    srd(P, 8, 4, W_BYTES); srd(P, 12, 6, WS_BYTES)
    P("s_lshr_b32 s25, s2, 1\ns_and_b32 s26, s2, 1")
    P("s_lshl_b32 s27, s25, 5\ns_lshl_b32 s28, s24, 3\ns_add_u32 s27, s27, s28\ns_mul_i32 s27, s27, 1280\ns_mul_i32 s28, s26, 640\ns_add_u32 s27, s27, s28")
    P("s_mul_i32 s29, s24, 5120 ; lds base of wave rows")
    for j in range(5):
        P(f"v_add_u32 v3, {64*j}, v1\nv_mul_u32_u24 v4, 1639, v3\nv_lshrrev_b32 v4, 16, v4")
        P("v_mul_u32_u24 v5, 40, v4\nv_sub_u32 v5, v3, v5\nv_mul_u32_u24 v4, 1280, v4\nv_lshl_add_u32 v6, v5, 4, v4")
        P(f"s_add_u32 m0, s29, {1024*j}\ns_nop 0\nbuffer_load_dwordx4 v6, s[8:11], s27 offen lds")
    P("s_waitcnt vmcnt(0)\ns_barrier")
    P("v_lshrrev_b32 v3, 5, v1\nv_lshlrev_b32 v3, 4, v3\nv_bfe_u32 v4, v1, 4, 1\nv_lshl_add_u32 v3, v4, 2, v3\nv_bfe_u32 v4, v1, 2, 2\nv_add_u32 v3, v3, v4")
    P("v_mul_u32_u24 v3, 640, v3\nv_and_b32 v4, 3, v1\nv_lshl_add_u32 v3, v4, 3, v3\ns_mul_i32 s28, s24, 160\nv_add_u32 v3, s28, v3")
    for j in range(5):
        P(f"ds_read_b64_tr_b16 v[{8+4*j}:{9+4*j}], v3 offset:{32*j}\nds_read_b64_tr_b16 v[{10+4*j}:{11+4*j}], v3 offset:{32*j+8*640}")
    P(f"s_lshl_b32 s28, s26, 2\ns_add_u32 s28, s28, s24\ns_lshl_b32 s28, s28, 7\ns_add_u32 s28, s28, s25\ns_mul_i32 s28, s28, 5120\ns_add_u32 s28, s28, {WFRAG}\ns_add_u32 s30, s28, 4096")
    P("v_lshlrev_b32 v4, 4, v1\ns_waitcnt lgkmcnt(0)")
    for j in range(5):
        so = 's28' if j < 4 else 's30'
        P(f"buffer_store_dwordx4 v[{8+4*j}:{11+4*j}], v4, s[12:15], {so} offen offset:{1024*(j&3)}")
    P("s_waitcnt vmcnt(0)\nL0_end:\ns_endpgm")
    K0 = P

    P = Prog(); n1 = 'attn_kernel'
    sX, sK, sV, sW, sWS = 4, 8, 12, 16, 20
    sWave, sHead, sB0, sU = 24, 25, 26, 27
    sOff, sT0, sT1, sT2 = 28, 29, 32, 33
    sRet = 30
    sWqG, sXG, sWqL, sI, sXL, sWqR = 34, 35, 36, 37, 38, 39
    sKG, sKL, sVG, sVL = 40, 41, 42, 43
    sC, sThr = 44, 45
    sM0 = 46
    sST = 48
    vO = 16; vS = [80, 96]; vNM = 112; vP = [128, 136]; vQ = 144
    vKb, vK, vVb, vV = 176, 180, 184, 188
    vWb, vW, vX = 192, 196, 200
    vWD = 204
    vXD = 210
    vL, vMx, vT = 214, 215, 216
    vOS = 224
    aK, aV = 0, 32
    stn = [0]
    def stamp():
        if stamps:
            P(f"s_memrealtime s[{sST+2*stn[0]}:{sST+2*stn[0]+1}]"); stn[0] += 1
    P(f"{n1}:")
    stamp()
    P("s_cmp_ge_u32 s2, 256\ns_cbranch_scc1 L1_end")
    P("s_load_dwordx4 s[64:67], s[0:1], 0\ns_load_dwordx4 s[68:71], s[0:1], 16\ns_load_dwordx2 s[72:73], s[0:1], 56")
    P(f"v_lshrrev_b32 v2, 6, v0\nv_and_b32 v1, 63, v0\ns_nop 0\nv_readfirstlane_b32 s{sWave}, v2")
    P(f"s_and_b32 s{sT0}, s2, 7\ns_lshl_b32 s{sT0}, s{sT0}, 2\ns_lshr_b32 s{sT1}, s2, 3\ns_and_b32 s{sHead}, s{sT1}, 3\ns_add_u32 s{sHead}, s{sHead}, s{sT0}\ns_lshr_b32 s{sB0}, s{sT1}, 2")
    P("s_waitcnt lgkmcnt(0)")
    srd(P, sX, 64, X_BYTES); srd(P, sK, 66, KV_BYTES); srd(P, sV, 68, KV_BYTES); srd(P, sW, 70, W_BYTES); srd(P, sWS, 72, WS_BYTES)
    P(f"s_cmp_eq_u32 s{sWave}, 3\ns_cbranch_scc1 L1_loader")
    P("v_and_b32 v2, 31, v1\nv_lshrrev_b32 v3, 5, v1\nv_bfe_u32 v4, v1, 2, 2\nv_bfe_u32 v5, v1, 4, 1\nv_and_b32 v6, 3, v1")
    P("v_lshrrev_b32 v7, 2, v2\nv_mul_u32_u24 v7, 1040, v7\nv_and_b32 v8, 3, v2\nv_lshl_add_u32 v7, v8, 8, v7\nv_lshl_add_u32 v7, v3, 4, v7")
    for u in range(4):
        P(f"v_xor_b32 v9, {u}, v8\nv_lshl_add_u32 v{vKb+u}, v9, 6, v7")
    P(f"v_mul_u32_u24 v7, 1040, v3\nv_lshl_add_u32 v7, v4, 8, v7\nv_lshl_add_u32 v7, v5, 5, v7\nv_lshl_add_u32 v7, v6, 3, v7\nv_add_u32 v7, {VRING}, v7")
    for t in range(4):
        P(f"v_xor_b32 v9, {t}, v4\nv_lshl_add_u32 v{vVb+t}, v9, 6, v7")
    P("v_and_b32 v8, 1, v6\nv_lshlrev_b32 v8, 1, v8\nv_lshrrev_b32 v9, 1, v6\nv_or_b32 v8, v8, v9")
    P(f"v_lshlrev_b32 v7, 11, v3\nv_lshl_add_u32 v7, v4, 8, v7\nv_lshl_add_u32 v7, v5, 5, v7\nv_lshl_add_u32 v7, v8, 3, v7\nv_add_u32 v7, {WQ0}, v7")
    for t in range(4):
        P(f"v_xor_b32 v9, {t}, v4\nv_lshl_add_u32 v{vWb+t}, v9, 6, v7")
    P(f"s_lshl_b32 s{sXL}, s{sWave}, 13\ns_add_u32 s{sXL}, s{sXL}, {XR0}")
    P(f"v_bfe_u32 v8, v2, 1, 3\nv_xor_b32 v8, v8, v3\nv_lshlrev_b32 v7, 7, v2\nv_add_u32 v7, s{sXL}, v7")
    for s in range(4):
        P(f"v_xor_b32 v9, {2*s}, v8\nv_lshl_add_u32 v{vX+s}, v9, 4, v7")
    P(f"v_lshrrev_b32 v7, 4, v1\nv_and_b32 v8, 15, v1\nv_lshlrev_b32 v9, 2, v7\nv_xor_b32 v8, v8, v9\nv_lshlrev_b32 v9, 13, v7\nv_lshl_add_u32 v8, v8, 4, v9")
    P(f"s_lshl_b32 s{sT0}, s{sWave}, 15\nv_add_u32 v{vWD}, s{sT0}, v8")
    for j in range(1, 6):
        P(f"v_add_u32 v{vWD+j}, {3*32768}, v{vWD+j-1}")
    P("v_lshrrev_b32 v8, 3, v1\nv_mul_u32_u24 v8, 1280, v8\nv_and_b32 v9, 7, v1\nv_xor_b32 v9, v9, v7")
    for pp in range(4):
        P(f"v_xor_b32 v10, {4*(pp&1)}, v9\nv_lshl_add_u32 v10, v10, 4, v8\nv_add_u32 v{vXD+pp}, {pp*10240}, v10")
    P(f"v_lshrrev_b32 v7, 4, v2\ns_lshl_b32 s{sT0}, s{sWave}, 1\nv_add_u32 v7, s{sT0}, v7\nv_cmp_lt_u32 vcc, 2, v7\nv_mov_b32 v8, {384-3}\nv_mov_b32 v10, 0\nv_cndmask_b32 v8, v10, v8, vcc")
    P(f"v_add_u32 v7, v7, v8\nv_lshlrev_b32 v7, 10, v7\nv_and_b32 v8, 15, v2\nv_lshl_add_u32 v8, v3, 4, v8\nv_lshl_add_u32 v{vOS}, v8, 4, v7")
    P(f"s_mov_b32 s{sC}, {hex(f2u(CSCALE))}\ns_mov_b32 s{sThr}, {hex(f2u(THR))}\ns_mov_b32 s{sU}, 0")

    def wq_issue():
        L = []
        L.append(f"s_mov_b32 m0, s{sWqL}")
        for j in range(5):
            L.append(f"buffer_load_dwordx4 v{vWD+j}, s[{sW}:{sW+3}], s{sWqG} offen lds")
            L.append("s_add_u32 m0, m0, 3072")
        return L
    def wq_issue_last(lab):
        return [f"s_cmp_lg_u32 s{sWave}, 0", f"s_cbranch_scc1 {lab}", f"buffer_load_dwordx4 v{vWD+5}, s[{sW}:{sW+3}], s{sWqG} offen lds", f"{lab}:"]
    def wq_adv():
        return [f"s_add_u32 s{sWqG}, s{sWqG}, {64*8192}", f"s_add_u32 s{sWqL}, s{sWqL}, 16384", f"s_cmp_ge_u32 s{sWqL}, {WQ0+3*16384}", f"s_cselect_b32 s{sT0}, {3*16384}, 0", f"s_sub_u32 s{sWqL}, s{sWqL}, s{sT0}"]
    def x_issue():
        L = [f"s_mov_b32 m0, s{sM0}"]
        for pp in range(4):
            L.append(f"buffer_load_dwordx4 v{vXD+pp}, s[{sX}:{sX+3}], s{sXG} offen lds")
            if pp < 3: L.append("s_add_u32 m0, m0, 1024")
        return L
    def emit_m0safe(L):
        for i, l in enumerate(L):
            P(l)
            if len(l.split())>1 and 'm0,' in l.split()[1] and i+1 < len(L) and L[i+1].endswith('lds'): P("s_nop 0")

    P("L1_unit:")
    P(f"s_lshl_b32 s{sT0}, s{sU}, 3\ns_add_u32 s{sT0}, s{sT0}, s{sB0}   ; batch")
    P(f"s_mul_i32 s{sXG}, s{sT0}, 96\ns_lshl_b32 s{sT1}, s{sWave}, 5\ns_add_u32 s{sXG}, s{sXG}, s{sT1}\ns_mul_i32 s{sXG}, s{sXG}, 1280")
    P(f"s_lshl_b32 s{sWqG}, s{sHead}, 8\ns_lshl_b32 s{sWqL}, s{sWave}, 10\ns_add_u32 s{sWqL}, s{sWqL}, {WQ0}\ns_mov_b32 s{sM0}, s{sXL}")
    for c in range(2):
        emit_m0safe(wq_issue() + ["s_nop 0"] + wq_issue_last(f"L1_wl{c}"));
        for l in wq_adv(): P(l)
        emit_m0safe(x_issue())
        P(f"s_add_u32 s{sXG}, s{sXG}, 128\ns_xor_b32 s{sM0}, s{sM0}, 4096" if (XR0 % 8192 == 0) else f"s_add_u32 s{sXG}, s{sXG}, 128\ns_sub_u32 s{sT0}, s{sM0}, s{sXL}\ns_xor_b32 s{sT0}, s{sT0}, 4096\ns_add_u32 s{sM0}, s{sXL}, s{sT0}")
    P(f"s_mov_b32 s{sI}, 0\ns_mov_b32 s{sWqR}, 0")
    for t in range(4): P(f"v_mov_b32 v{vW+t}, v{vWb+t}")
    for r in range(64): P(f"v_mov_b32 v{vO+r}, 0")
    for r in range(16): P(f"v_accvgpr_write_b32 a{aK+16+r}, 0")
    for r in range(4): P(f"v_accvgpr_write_b32 a{aV+12+r}, 0")
    def a_reads(s, st):
        L = []
        for t in range(4):
            for e in range(2):
                L.append(f"ds_read_b64_tr_b16 {ar(aK+16*st+4*t+2*e,2)}, v{vW+t} offset:{s*4096+e*1024}")
        return L
    def q_mfma(t, st, bs): return f"v_mfma_f32_32x32x16_bf16 {vr(vO+16*t,16)}, {ar(aK+16*st+4*t,4)}, {ar(aV+4*bs,4)}, {vr(vO+16*t,16)}"
    P("L1_qstep:")
    P("s_waitcnt vmcnt(9) lgkmcnt(0)\ns_barrier")
    rd = a_reads(0, 0)
    for s in range(3): P(f"ds_read_b128 {ar(aV+4*s,4)}, v{vX+s}")
    fill = [rd[0:2], rd[2:4], rd[4:6], rd[6:8]]
    wq = wq_issue()
    for t in range(4):
        P(q_mfma(t, 1, 3))
        for l in fill[t]: P(l)
    P(f"ds_read_b128 {ar(aV+12,4)}, v{vX+3}")
    P(f"s_cmp_ge_u32 s{sI}, 8\ns_cselect_b32 s{sT0}, 0x7f000000, 0\ns_or_b32 s{sWqG}, s{sWqG}, s{sT0}\ns_or_b32 s{sXG}, s{sXG}, s{sT0}")
    emit_m0safe(wq + ["s_nop 0"] + wq_issue_last("L1_wl2"))
    for l in wq_adv(): P(l)
    P("s_waitcnt lgkmcnt(0)")
    for s in range(3):
        st = s & 1
        rd = a_reads(s+1, st ^ 1)
        extra = []
        if s == 0:
            extra = x_issue()
        for t in range(4):
            P(q_mfma(t, st, s))
            for l in rd[2*t:2*t+2]: P(l)
            if s == 0:
                if t == 0: P(f"s_mov_b32 m0, s{sM0}")
                else: P("s_add_u32 m0, m0, 1024")
                P("s_nop 0")
                P(f"buffer_load_dwordx4 v{vXD+t}, s[{sX}:{sX+3}], s{sXG} offen lds")
        if s == 0:
            P(f"s_add_u32 s{sXG}, s{sXG}, 128\ns_sub_u32 s{sT0}, s{sM0}, s{sXL}\ns_xor_b32 s{sT0}, s{sT0}, 4096\ns_add_u32 s{sM0}, s{sXL}, s{sT0}")
            P(f"s_lshl_b32 s{sT1}, s{sT0}, 1\ns_sub_u32 s{sT1}, s{sT1}, 4096")
            for k in range(4): P(f"v_add_u32 v{vX+k}, s{sT1}, v{vX+k}")
        if s < 2: P("s_waitcnt lgkmcnt(0)")
    P(f"s_add_u32 s{sWqR}, s{sWqR}, 16384\ns_cmp_eq_u32 s{sWqR}, {3*16384}\ns_cselect_b32 s{sWqR}, 0, s{sWqR}")
    for t in range(4): P(f"v_add_u32 v{vW+t}, s{sWqR}, v{vWb+t}")
    P(f"s_add_u32 s{sI}, s{sI}, 1\ns_cmp_lt_u32 s{sI}, 10\ns_cbranch_scc1 L1_qstep")
    P("s_waitcnt lgkmcnt(0)")
    for t in range(4): P(q_mfma(t, 1, 3))
    P("s_nop 7\ns_nop 3")
    for t in range(4):
        for r in range(16): P(f"v_mul_f32 v{vO+16*t+r}, s{sC}, v{vO+16*t+r}")
        for k in range(8): P(f"v_cvt_pk_bf16_f32 v{vQ+8*t+k}, v{vO+16*t+2*k}, v{vO+16*t+2*k+1}")
    for r in range(64): P(f"v_mov_b32 v{vO+r}, 0")
    P(f"v_mov_b32 v{vL}, 0\ns_mul_i32 s{sOff}, s{sU}, {ITEM}")
    P("s_waitcnt vmcnt(0)")
    stamp()

    def adv_off(): return [f"s_add_u32 s{sOff}, s{sOff}, {ITEM}", f"s_cmp_eq_u32 s{sOff}, {NSLOT*ITEM}", f"s_cselect_b32 s{sOff}, 0, s{sOff}"]
    def k_addr(): return [f"v_add_u32 v{vK+u}, s{sOff}, v{vKb+u}" for u in range(4)]
    def v_addr(): return [f"v_add_u32 v{vV+t}, s{sOff}, v{vVb+t}" for t in range(4)]
    def k_read(s): return f"ds_read_b128 {ar(aK+4*s,4)}, v{vK+(s>>1)} offset:{(s&1)*32}"
    def v_read(k, e):
        s, t = k >> 2, k & 3
        return f"ds_read_b64_tr_b16 {ar(aV+4*k+2*e,2)}, v{vV+t} offset:{s*4160+e*2080}"
    def qk(par, s, first0):
        c = vr(vS[par],16) if s else ('0' if first0 else vr(vNM,16))
        return f"v_mfma_f32_32x32x16_bf16 {vr(vS[par],16)}, {ar(aK+4*s,4)}, {vr(vQ+4*s,4)}, {c}"
    def pv(par, k):
        s, t = k >> 2, k & 3
        return f"v_mfma_f32_32x32x16_bf16 {vr(vO+16*t,16)}, {ar(aV+4*k,4)}, {vr(vP[par]+4*s,4)}, {vr(vO+16*t,16)}"
    def maxchain(par):
        S = vS[par]
        L = [f"v_max3_f32 v{vMx}, v{S}, v{S+1}, v{S+2}"]
        for k in range(3, 15, 2): L.append(f"v_max3_f32 v{vMx}, v{vMx}, v{S+k}, v{S+k+1}")
        L.append(f"v_max_f32 v{vMx}, v{vMx}, v{S+15}")
        return L
    rare_sites = []
    def iteration(par, do_qk, do_exp, do_pv, do_kread, do_check, first0=False, tag=''):
        G = [[] for _ in range(17)]
        pre = [[] for _ in range(16)]
        M = [None]*16
        if do_qk:
            for s in range(8): M[s] = qk(par, s, first0)
        if do_pv:
            for k in range(8):
                M[8+k] = pv(par, k)
                G[k] += [v_read(k, 0), v_read(k, 1)]
        if do_kread:
            for u, l in enumerate(k_addr()): G[1+u].append(l)
            for s, g in enumerate([8, 8, 9, 9, 10, 10, 11, 12]): G[g].append(k_read(s))
        if do_pv:
            pre[8].append("s_waitcnt lgkmcnt(4)")
            pre[14].append(f"s_waitcnt lgkmcnt({8 if do_kread else 0})")
        if do_exp:
            S = vS[par ^ 1]; Pn = vP[par ^ 1]
            for i in range(16):
                G[i].insert(0, f"v_exp_f32 v{S+i}, v{S+i}")
                G[i+1].append(f"v_add_f32 v{vL}, v{vL}, v{S+i}")
                if i & 1: G[i+1].append(f"v_cvt_pk_bf16_f32 v{Pn+(i>>1)}, v{S+i-1}, v{S+i}")
        a = adv_off(); G[8] += a[:1]; G[9] += a[1:]
        for t, l in enumerate(v_addr()): G[10+t].append(l)
        if do_check:
            mc = maxchain(par)
            for l, g in zip(mc, [11, 12, 13, 13, 14, 14, 15, 15]): G[g].append(l)
        P("s_waitcnt lgkmcnt(0)\ns_barrier")
        for g in range(16):
            for l in pre[g]: P(l)
            if M[g]: P(M[g])
            if g == 11 and do_check and not do_pv: P("s_nop 7")
            for l in G[g]: P(l)
        if do_exp and not G[16][0].startswith('s_'): P("s_nop 0") if not do_check else None
        for l in G[16]: P(l)
        if do_check:
            lab = f"L1_rare{tag}"
            P(f"v_cmp_lt_f32 vcc, s{sThr}, v{vMx}\ns_cbranch_vccnz {lab}\n{lab}_ret:")
            rare_sites.append((lab, par))
    P("s_waitcnt lgkmcnt(0)\ns_barrier")
    for l in k_addr(): P(l)
    for s in range(8): P(k_read(s))
    for l in adv_off(): P(l)
    iteration(0, True, False, False, True, False, first0=True)
    P("s_nop 3")
    for l in maxchain(0): P(l)
    P(f"v_mov_b32 v{vT}, v{vMx}\ns_nop 1\nv_permlane32_swap_b32 v{vT}, v{vMx}\nv_max_f32 v{vMx}, v{vT}, v{vMx}")
    for r in range(16): P(f"v_sub_f32 v{vS[0]+r}, v{vS[0]+r}, v{vMx}")
    for r in range(16): P(f"v_sub_f32 v{vNM+r}, 0, v{vMx}")
    iteration(1, True, True, False, True, True, tag='a')
    P(f"s_mov_b32 s{sI}, 0\nL1_aloop:")
    iteration(0, True, True, True, True, True, tag='b')
    iteration(1, True, True, True, True, True, tag='c')
    P(f"s_add_u32 s{sI}, s{sI}, 1\ns_cmp_lt_u32 s{sI}, 7\ns_cbranch_scc1 L1_aloop")
    iteration(0, False, True, True, False, False)
    iteration(1, False, False, True, False, False)
    P(f"v_mov_b32 v{vT}, v{vL}\ns_nop 1\nv_permlane32_swap_b32 v{vT}, v{vL}\nv_add_f32 v{vL}, v{vT}, v{vL}\nv_rcp_f32 v{vL}, v{vL}")
    P(f"s_lshl_b32 s{sT0}, s{sU}, 3\ns_add_u32 s{sT0}, s{sT0}, s{sB0}\ns_lshl_b32 s{sT0}, s{sT0}, 8\ns_lshl_b32 s{sT1}, s{sHead}, 2\ns_add_u32 s{sT0}, s{sT0}, s{sT1}\ns_mul_i32 s{sT0}, s{sT0}, 3072\ns_add_u32 s{sT0}, s{sT0}, {OFRAG}")
    P("s_nop 3")
    for t in range(4):
        for r in range(16): P(f"v_mul_f32 v{vO+16*t+r}, v{vL}, v{vO+16*t+r}")
        for k in range(8): P(f"v_cvt_pk_bf16_f32 v{vQ+8*t+k}, v{vO+16*t+2*k}, v{vO+16*t+2*k+1}")
        for a in range(2):
            P(f"buffer_store_dwordx4 {vr(vQ+8*t+4*a,4)}, v{vOS}, s[{sWS}:{sWS+3}], s{sT0} offen offset:{512*a}{ost}")
        if t < 3: P(f"s_add_u32 s{sT0}, s{sT0}, 3072")
    stamp()
    P(f"s_add_u32 s{sU}, s{sU}, 1\ns_cmp_lt_u32 s{sU}, 2\ns_cbranch_scc0 L1_fin")
    if stamps:
        P(f"s_waitcnt lgkmcnt(0)\ns_mov_b64 s[{sST+6}:{sST+7}], s[{sST+2}:{sST+3}]\ns_mov_b64 s[{sST+8}:{sST+9}], s[{sST+4}:{sST+5}]")
    P("s_branch L1_unit")
    P("L1_fin:\ns_waitcnt vmcnt(0)")
    if stamps:
        P(f"s_memrealtime s[{sST+10}:{sST+11}]\ns_waitcnt lgkmcnt(0)")
        order = [0, 6, 8, 2, 4, 10]
        for i, o in enumerate(order): P(f"v_mov_b32 v{16+2*i}, s{sST+o}\nv_mov_b32 v{17+2*i}, s{sST+o+1}")
        P(f"s_mul_i32 s{sT0}, s2, 48\ns_add_u32 s{sT0}, s{sT0}, {STAMP}\nv_mov_b32 v3, 0\nv_cmp_eq_u32 vcc, 0, v0\ns_and_saveexec_b64 s[74:75], vcc\ns_cbranch_execz L1_end")
        for i in range(3): P(f"buffer_store_dwordx4 v[{16+4*i}:{19+4*i}], v3, s[{sWS}:{sWS+3}], s{sT0} offen offset:{16*i}")
        P("s_waitcnt vmcnt(0)")
    P("s_endpgm")
    for lab, par in rare_sites:
        S = vS[par]; Pp = vP[par ^ 1]
        P(f"{lab}:\ns_nop 15\nv_mov_b32 v{vT}, v{vMx}\ns_nop 1\nv_permlane32_swap_b32 v{vT}, v{vMx}\nv_max3_f32 v{vMx}, v{vT}, v{vMx}, 0")
        P(f"v_exp_f32 v{vT+1}, -v{vMx}")
        for r in range(16): P(f"v_sub_f32 v{S+r}, v{S+r}, v{vMx}")
        for r in range(16): P(f"v_sub_f32 v{vNM+r}, v{vNM+r}, v{vMx}")
        P(f"v_mul_f32 v{vL}, v{vT+1}, v{vL}")
        for r in range(64): P(f"v_mul_f32 v{vO+r}, v{vT+1}, v{vO+r}")
        for k in range(8):
            P(f"v_lshlrev_b32 v{vT+2}, 16, v{Pp+k}\nv_and_b32 v{vT+3}, 0xffff0000, v{Pp+k}\nv_mul_f32 v{vT+2}, v{vT+1}, v{vT+2}\nv_mul_f32 v{vT+3}, v{vT+1}, v{vT+3}\nv_cvt_pk_bf16_f32 v{Pp+k}, v{vT+2}, v{vT+3}")
        P(f"s_nop 1\ns_branch {lab}_ret")
    P("L1_loader:")
    P("v_lshrrev_b32 v7, 4, v1\nv_and_b32 v8, 15, v1\nv_lshlrev_b32 v9, 2, v7\nv_xor_b32 v8, v8, v9\nv_lshlrev_b32 v9, 8, v7\nv_lshl_add_u32 v2, v8, 4, v9")
    P(f"s_lshl_b32 s{sT0}, s{sB0}, 5\ns_add_u32 s{sT0}, s{sT0}, s{sHead}\ns_lshl_b32 s{sKG}, s{sT0}, 17\ns_mov_b32 s{sVG}, s{sKG}")
    P(f"s_mov_b32 s{sKL}, {KRING}\ns_mov_b32 s{sVL}, {VRING+3*ITEM}")
    fifo = []
    def issue(kind, n):
        if n >= 32: return
        if n == 16:
            r = sKG if kind == 'K' else sVG
            P(f"s_add_u32 s{r}, s{r}, {8*32*131072 - 131072}")
        P(f"s_call_b64 s[{sRet}:{sRet+1}], L1_ld{kind}")
        fifo.append((kind, n))
    def waitfor(items):
        items = [it for it in items if it in fifo]
        if not items: return
        last = max(fifo.index(it) for it in items)
        N = min(63, 8*(len(fifo) - 1 - last))
        P(f"s_waitcnt vmcnt({N})")
    for it in [('K',0),('K',1),('K',2),('K',3),('V',0),('K',4),('V',1)]: issue(*it)
    for u in range(2):
        for i in range(10):
            P("s_barrier")
            if u == 0 and i in (2, 4, 6): issue('V', 2 + (i-2)//2)
            if u == 1 and i == 0: issue('V', 20)
        for p in range(-1, 18):
            need = []
            if p <= 14: need.append(('K', 16*u+p+1))
            if p >= 2: need.append(('V', 16*u+p-2))
            waitfor(need)
            P("s_barrier")
            if 0 <= p <= 15: issue('K', 16*u+p+5)
            if p >= 3: issue('V', 16*u+p+2)
    assert len(fifo) == 64, len(fifo)
    P("s_endpgm")
    for kind, g, l, srdn, base in (('K', sKG, sKL, sK, KRING), ('V', sVG, sVL, sV, VRING)):
        P(f"L1_ld{kind}:\ns_mov_b32 m0, s{l}\ns_add_u32 s{sT0}, s{g}, 4096")
        for i in range(8):
            so = g if i < 4 else sT0
            P(f"buffer_load_dwordx4 v2, s[{srdn}:{srdn+3}], s{so} offen offset:{1024*(i&3)}{nt} lds")
            if i < 7: P(f"s_add_u32 m0, m0, {16 + (4096 if i == 3 else 0)}\ns_nop 0")
        P(f"s_add_u32 s{g}, s{g}, 8192\ns_add_u32 s{l}, s{l}, {ITEM}\ns_cmp_eq_u32 s{l}, {base+NSLOT*ITEM}\ns_cselect_b32 s{l}, {base}, s{l}\ns_setpc_b64 s[{sRet}:{sRet+1}]")
    P("L1_end:\ns_endpgm")
    K1 = P

    P = Prog(); n2 = 'oproj_kernel'
    sO, sWS2 = 4, 8
    D = 4
    vA = 64
    acc = 4
    P(f"{n2}:")
    if stamps: P("s_memrealtime s[48:49]")
    P("s_cmp_ge_u32 s2, 256\ns_cbranch_scc1 L2_end")
    P("s_load_dwordx2 s[64:65], s[0:1], 40\ns_load_dwordx2 s[66:67], s[0:1], 56")
    P("v_lshrrev_b32 v2, 6, v0\nv_and_b32 v1, 63, v0\ns_nop 0\nv_readfirstlane_b32 s24, v2")
    P("s_and_b32 s25, s2, 7\ns_lshr_b32 s26, s2, 3\ns_and_b32 s27, s25, 1\ns_lshl_b32 s27, s27, 2\ns_and_b32 s28, s26, 3\ns_add_u32 s27, s27, s28 ; cblock")
    P("s_lshr_b32 s28, s25, 1\ns_lshl_b32 s28, s28, 3\ns_lshr_b32 s29, s26, 2\ns_add_u32 s28, s28, s29 ; rblock")
    P("s_waitcnt lgkmcnt(0)")
    srd(P, sO, 64, OUT_BYTES); srd(P, sWS2, 66, WS_BYTES)
    P(f"s_lshl_b32 s30, s28, 7\ns_lshl_b32 s31, s24, 5\ns_add_u32 s30, s30, s31\ns_mul_i32 s30, s30, 3072\ns_add_u32 s30, s30, {OFRAG}")
    P(f"s_lshl_b32 s32, s27, 7\ns_add_u32 s32, s32, s31\ns_mul_i32 s32, s32, 5120\ns_add_u32 s32, s32, {WFRAG}")
    P("v_lshlrev_b32 v2, 4, v1\nv_add_u32 v3, 4096, v2")
    def loads(d):
        b = vA + 32*d
        L = [f"buffer_load_dwordx4 {vr(b+4*j,4)}, v2, s[{sWS2}:{sWS2+3}], s30 offen offset:{1024*j}" for j in range(3)]
        L += [f"buffer_load_dwordx4 {vr(b+12+4*j,4)}, {'v2' if j<4 else 'v3'}, s[{sWS2}:{sWS2+3}], s32 offen offset:{1024*(j&3)}" for j in range(5)]
        return L
    adv = "s_add_u32 s30, s30, 3072\ns_add_u32 s32, s32, 5120"
    for d in range(D-1):
        for l in loads(d): P(l)
        P(adv)
    for r in range(60): P(f"v_mov_b32 v{acc+r}, 0")
    P("s_mov_b32 s33, 0\nL2_loop:")
    for d in range(D):
        P(f"s_cmp_ge_u32 s33, {32-(D-1)-d}\ns_cselect_b32 s34, 0x7f000000, 0\ns_or_b32 s30, s30, s34\ns_or_b32 s32, s32, s34")
        L = loads((d+D-1) % D)
        P(f"s_waitcnt vmcnt({8*(D-2)})")
        b = vA + 32*d
        k = 0
        for nb in range(5):
            for qb in range(3):
                a = acc + 4*(qb*5+nb)
                P(f"v_mfma_f32_16x16x32_bf16 {vr(a,4)}, {vr(b+12+4*nb,4)}, {vr(b+4*qb,4)}, {vr(a,4)}")
                if k % 2 == 0 and L: P(L.pop(0))
                k += 1
        P(adv)
    P(f"s_add_u32 s33, s33, {D}\ns_cmp_lt_u32 s33, 32\ns_cbranch_scc1 L2_loop")
    RS = 336; WSZ = 48*RS
    P(f"v_and_b32 v2, 15, v1\nv_mul_u32_u24 v2, {RS}, v2\nv_lshrrev_b32 v3, 4, v1\nv_lshl_add_u32 v2, v3, 4, v2\ns_mul_i32 s34, s24, {WSZ}\nv_add_u32 v2, s34, v2\ns_nop 3")
    for qb in range(3):
        for nb in range(5):
            a = acc + 4*(qb*5+nb)
            P(f"ds_write_b128 v2, {vr(a,4)} offset:{qb*16*RS + nb*64}")
    P("s_waitcnt vmcnt(0) lgkmcnt(0)\ns_barrier")
    P(f"s_mul_i32 s35, s28, {48*1280}\ns_mul_i32 s36, s27, 160\ns_add_u32 s35, s35, s36")
    for ps in range(2):
        P(f"v_add_u32 v4, {256*ps}, v0\nv_mul_u32_u24 v5, 6554, v4\nv_lshrrev_b32 v5, 16, v5\nv_mul_u32_u24 v6, 10, v5\nv_sub_u32 v6, v4, v6")
        P(f"v_mul_u32_u24 v7, {RS}, v5\nv_lshl_add_u32 v7, v6, 5, v7\nv_mul_u32_u24 v8, 1280, v5\nv_lshl_add_u32 v8, v6, 4, v8")
        if ps == 1:
            P("v_cmp_gt_u32 vcc, 480, v4\ns_and_saveexec_b64 s[38:39], vcc\ns_cbranch_execz L2_done")
        for w in range(4):
            P(f"ds_read_b128 {vr(16+8*w,4)}, v7 offset:{w*WSZ}\nds_read_b128 {vr(20+8*w,4)}, v7 offset:{w*WSZ+16}")
        P("s_waitcnt lgkmcnt(0)")
        for j in range(8):
            P(f"v_add_f32 v{16+j}, v{16+j}, v{24+j}\nv_add_f32 v{32+j}, v{32+j}, v{40+j}\nv_add_f32 v{16+j}, v{16+j}, v{32+j}")
        for j in range(4): P(f"v_cvt_pk_bf16_f32 v{48+4*ps+j}, v{16+2*j}, v{17+2*j}")
        P(f"buffer_store_dwordx4 {vr(48+4*ps,4)}, v8, s[{sO}:{sO+3}], s35 offen")
    P("L2_done:\ns_waitcnt vmcnt(0)")
    P("L2_end:\ns_endpgm")
    K2 = P

    for nm, K in (('K0', K0), ('K1', K1), ('K2', K2)):
        bad = check_hazards(K.lines)
        if bad: print(nm, len(bad), 'hazards');
    hdr = f"""; @launch kernel={n0} grid=(256,1,1) block=(256,1,1) lds=20480
; @launch kernel={n1} grid=(256,1,1) block=(256,1,1) lds={LDS1}
; @launch kernel={n2} grid=(256,1,1) block=(256,1,1) lds={4*WSZ}
.amdgcn_target "amdgcn-amd-amdhsa--gfx950"
.text
"""
    s = hdr
    for nm, K in ((n0, K0), (n1, K1), (n2, K2)):
        s += f".globl {nm}\n.p2align 8\n.type {nm},@function\n" + K.text() + "\n"
    s += '.section .rodata,"a"\n'
    for nm, vg, ac in ((n0, 32, 32), (n1, 512, 256), (n2, 256, 256)):
        s += ".p2align 6\n" + kdesc(nm, vg, ac)
    return s

if __name__ == '__main__':
    open('v1_nt.s', 'w').write(gen(' nt'))
    open('v1_def.s', 'w').write(gen(''))
    open('v1_nt_st.s', 'w').write(gen(' nt', stamps=True))
    open('v1_def_st.s', 'w').write(gen('', stamps=True))
```
